```python
import torch

def _softmax(x, axis=-1):
    return torch.softmax(x, dim=axis)
def _gelu(x):
    return torch.nn.functional.gelu(x, approximate="tanh")
def _silu(x):
    return torch.nn.functional.silu(x)
def _sigmoid(x):
    return torch.sigmoid(x)
def _layernorm(x, axis=-1, eps=1e-5):
    m = x.mean(dim=axis, keepdim=True)
    v = x.var(dim=axis, keepdim=True, unbiased=False)
    return (x - m) / torch.sqrt(v + eps)
def _scatter_add(tgt, idx, src, axis=0):
    return tgt.clone().index_add_(axis, idx, src)
def _segment_sum(src, seg, n):
    out = torch.zeros((n,) + src.shape[1:], dtype=src.dtype)
    return out.index_add_(0, seg, src)
def _pad(x, pw):
    flat = tuple(v for pair in reversed(pw) for v in pair)
    return torch.nn.functional.pad(x, flat)

kernel_name = 'interleave_layers__gqa_block_cached__gqa_block_cached__decode'

def setup_inputs():

    _w = (lambda a: (lambda t: t.to(torch.bfloat16) if t.is_floating_point() else t)(torch.as_tensor(a)))
    def _A_setup():
        B, Sq, D = 4, 1, 640
        Hq, Hkv, Sk, Dh = 32, 32, 4096, 128
        assert Hq % Hkv == 0, (Hq, Hkv)
        return {
            "x": _w((lambda *s: torch.randn(*s, dtype=torch.bfloat16) * 0.1)(B, Sq, D)),
            "k_cache": _w((lambda *s: torch.randn(*s, dtype=torch.bfloat16) * 0.8)(B, Hkv, Sk, Dh)),
            "v_cache": _w((lambda *s: torch.randn(*s, dtype=torch.bfloat16) * 3.2)(B, Hkv, Sk, Dh)),
            "wq": _w((lambda *s: torch.randn(*s, dtype=torch.bfloat16) * 0.8)(D, Hq * Dh) * (D ** -0.5)),
            "wo": _w((lambda *s: torch.randn(*s, dtype=torch.bfloat16) * 3.2)(Hq * Dh, D) * ((Hq * Dh) ** -0.5)),
        }
    _A_in = _A_setup()

    def _B_setup():
        B, Sq, D = 4, 1, 640
        Hq, Hkv, Sk, Dh = 32, 32, 4096, 128
        assert Hq % Hkv == 0, (Hq, Hkv)
        return {
            "x": _w((lambda *s: torch.randn(*s, dtype=torch.bfloat16) * 0.1)(B, Sq, D)),
            "k_cache": _w((lambda *s: torch.randn(*s, dtype=torch.bfloat16) * 1.6)(B, Hkv, Sk, Dh)),
            "v_cache": _w((lambda *s: torch.randn(*s, dtype=torch.bfloat16) * 1.6)(B, Hkv, Sk, Dh)),
            "wq": _w((lambda *s: torch.randn(*s, dtype=torch.bfloat16) * 1.6)(D, Hq * Dh) * (D ** -0.5)),
            "wo": _w((lambda *s: torch.randn(*s, dtype=torch.bfloat16) * 1.6)(Hq * Dh, D) * ((Hq * Dh) ** -0.5)),
        }
    _B_in = _B_setup()

    return {
        "A_x": _A_in["x"],
        "A_k_cache": _A_in["k_cache"],
        "A_v_cache": _A_in["v_cache"],
        "A_wq": _A_in["wq"],
        "A_wo": _A_in["wo"],
        "B_x": _B_in["x"],
        "B_k_cache": _B_in["k_cache"],
        "B_v_cache": _B_in["v_cache"],
        "B_wq": _B_in["wq"],
        "B_wo": _B_in["wo"],
    }

def reference(A_x, A_k_cache, A_v_cache, A_wq, A_wo, B_x, B_k_cache, B_v_cache, B_wq, B_wo):
    def _A_ref(x, k_cache, v_cache, wq, wo):
        B, Sq, D = x.shape
        Hq, Dh = 32, 128
        Hkv = k_cache.shape[1]
        rep = Hq // Hkv
        q = (lambda x, *d: x.permute(*d))((x @ wq).reshape(B, Sq, Hq, Dh), 0, 2, 1, 3)
        k = (lambda x, n, axis: torch.repeat_interleave(x, n, dim=axis))(k_cache, rep, axis=1)
        v = (lambda x, n, axis: torch.repeat_interleave(x, n, dim=axis))(v_cache, rep, axis=1)
        scores = torch.einsum("bhqd,bhkd->bhqk", q, k) * (Dh ** -0.5)
        p = _softmax(scores, axis=-1)
        o = torch.einsum("bhqk,bhkd->bhqd", p, v)
        return (lambda x, *d: x.permute(*d))(o, 0, 2, 1, 3).reshape(B, Sq, Hq * Dh) @ wo

    def _B_ref(x, k_cache, v_cache, wq, wo):
        B, Sq, D = x.shape
        Hq, Dh = 32, 128
        Hkv = k_cache.shape[1]
        rep = Hq // Hkv
        q = (lambda x, *d: x.permute(*d))((x @ wq).reshape(B, Sq, Hq, Dh), 0, 2, 1, 3)
        k = (lambda x, n, axis: torch.repeat_interleave(x, n, dim=axis))(k_cache, rep, axis=1)
        v = (lambda x, n, axis: torch.repeat_interleave(x, n, dim=axis))(v_cache, rep, axis=1)
        scores = torch.einsum("bhqd,bhkd->bhqk", q, k) * (Dh ** -0.5)
        p = _softmax(scores, axis=-1)
        o = torch.einsum("bhqk,bhkd->bhqd", p, v)
        return (lambda x, *d: x.permute(*d))(o, 0, 2, 1, 3).reshape(B, Sq, Hq * Dh) @ wo

    x = A_x
    x = x + _A_ref(_layernorm(x, axis=-1), A_k_cache, A_v_cache, A_wq, A_wo)
    x = x + _B_ref(_layernorm(x, axis=-1), B_k_cache, B_v_cache, B_wq, B_wo)
    x = x + _A_ref(_layernorm(x, axis=-1), A_k_cache, A_v_cache, A_wq, A_wo)
    x = x + _B_ref(_layernorm(x, axis=-1), B_k_cache, B_v_cache, B_wq, B_wo)
    return x
```

```python
import re

REG_RE = re.compile(r'\b([vas])(\d+)\b|\b([vas])\[(\d+):(\d+)\]|\b(vcc|exec|m0)(?:_lo|_hi)?\b')

def regs_of(op):
    out = set()
    for m in REG_RE.finditer(op):
        if m.group(1):
            out.add((m.group(1), int(m.group(2))))
        elif m.group(3):
            for k in range(int(m.group(4)), int(m.group(5)) + 1):
                out.add((m.group(3), k))
        else:
            out.add((m.group(6), 0))
    return out

def split_ops(s):
    ops, depth, cur = [], 0, ""
    for ch in s:
        if ch in "[(": depth += 1
        if ch in "])": depth -= 1
        if ch == "," and depth == 0:
            ops.append(cur.strip()); cur = ""
        else:
            cur += ch
    if cur.strip(): ops.append(cur.strip())
    return ops

TRANS = ("v_exp_f32", "v_log_f32", "v_rcp_f32", "v_rsq_f32", "v_sqrt_f32", "v_sin_f32", "v_cos_f32")

class Ins:
    __slots__ = ("mn", "kind", "w", "r", "dppsrc", "srcc", "trans", "store_data", "dist")

def isvec(x): return x[0] in "va" and x[0] != "vcc"
def vec(s): return {x for x in s if x[0] in ("v", "a")}
def sca(s): return {x for x in s if x[0] in ("s", "vcc")}

def parse(text):
    t = text.split(";")[0].strip()
    parts = t.split(None, 1)
    mn = parts[0]
    rest = parts[1] if len(parts) > 1 else ""
    ops = split_ops(rest)
    clean = []
    for o in ops:
        clean.append(o)
    i = Ins(); i.mn = mn; i.w = set(); i.r = set(); i.dppsrc = set(); i.srcc = None; i.trans = False; i.store_data = set(); i.dist = 0
    def R(o):
        o2 = o.split(" ")[0]
        return regs_of(o2)
    if mn.startswith("v_mfma"):
        i.kind = "mfma"; i.w = R(ops[0]); i.r = R(ops[1]) | R(ops[2]) | R(ops[3]); i.srcc = R(ops[3])
    elif mn.startswith("v_"):
        i.kind = "valu"
        if mn.startswith("v_permlane"):
            i.w = R(ops[0]) | R(ops[1]); i.r = set(i.w); i.kind = "perm"
        elif mn.startswith("v_readlane") or mn.startswith("v_readfirstlane"):
            i.w = R(ops[0]); i.r = set().union(*[R(o) for o in ops[1:]]); i.kind = "rdlane"
        else:
            i.w = R(ops[0]); i.r = set().union(*[R(o) for o in ops[1:]]) if len(ops) > 1 else set()
            if mn.startswith(("v_add_co", "v_addc_co", "v_sub_co")):
                i.w |= R(ops[1])
            if mn.startswith(("v_fmac", "v_dot2c", "v_writelane")) or "_dpp" in mn:
                i.r |= R(ops[0])
            if "_dpp" in mn:
                i.dppsrc = R(ops[1])
            if mn.startswith(TRANS): i.trans = True
    elif mn.startswith(("buffer_", "global_")):
        i.kind = "vmem"
        allr = set().union(*[R(o) for o in ops])
        if "load" in mn and not re.search(r"\blds\b", rest):
            i.w = R(ops[0]); i.r = set().union(*[R(o) for o in ops[1:]])
        else:
            i.r = allr
            if re.search(r"\blds\b", rest): i.r |= {("m0", 0)}; i.kind = "vmem_lds"
            if "store_dwordx4" in mn or "store_dwordx3" in mn:
                i.store_data = R(ops[0]) if mn.startswith("buffer_") else R(ops[1])
    elif mn.startswith("ds_"):
        i.kind = "ds"
        if mn.startswith("ds_read") or "permute" in mn or "swizzle" in mn or "_rtn_" in mn:
            i.w = R(ops[0]); i.r = set().union(*[R(o) for o in ops[1:]])
        else:
            i.r = set().union(*[R(o) for o in ops])
    elif mn.startswith("s_"):
        i.kind = "salu"
        if mn.startswith(("s_cmp", "s_waitcnt", "s_nop", "s_branch", "s_cbranch", "s_barrier", "s_endpgm", "s_sleep", "s_setprio", "s_setpc", "s_bitcmp")):
            i.r = set().union(*[R(o) for o in ops]) if ops else set()
        else:
            i.w = R(ops[0]); i.r = set().union(*[R(o) for o in ops[1:]]) if len(ops) > 1 else set()
    else:
        raise ValueError("unknown instr " + text)
    return i

VALUK = ("valu", "perm", "rdlane")

def need(p, c):
    n = 0
    if p.kind in VALUK:
        pv, ps = vec(p.w), sca(p.w)
        if pv:
            if c.dppsrc & pv: n = max(n, 2)
            if c.kind == "mfma" and c.r & pv: n = max(n, 2)
            if c.kind == "perm" and c.r & pv: n = max(n, 2)
            if c.kind == "rdlane" and c.r & pv: n = max(n, 1)
            if p.trans and c.kind in VALUK and not c.trans and c.r & pv: n = max(n, 1)
            if p.trans and c.kind in ("vmem", "vmem_lds", "ds") and c.r & pv: n = max(n, 1)
        if ps:
            if c.kind in VALUK and c.r & ps: n = max(n, 4 if (c.kind == "rdlane" or c.mn.startswith("v_writelane")) else 2)
            if c.kind in ("vmem", "vmem_lds") and c.r & ps: n = max(n, 5)
            if c.kind == "salu" and c.r & ps: n = max(n, 1)
    if p.kind == "mfma":
        if c.kind == "mfma":
            ab = c.r - (c.srcc or set())
            if ab & p.w: n = max(n, 8)
            elif (c.srcc & p.w) and c.srcc != p.w: n = max(n, 6)
            elif (c.w & p.w) and c.srcc != p.w: n = max(n, 8)
        else:
            if (c.r | c.w) & p.w: n = max(n, 8)
            if c.kind in VALUK and p.srcc and (c.w & p.srcc): n = max(n, 3)
    if p.kind == "salu":
        if ("m0", 0) in p.w and c.kind == "vmem_lds": n = max(n, 1)
        if ("exec", 0) in p.w and (c.dppsrc or c.kind in ("perm", "rdlane")): n = max(n, 1)
    if p.store_data and (c.w & p.store_data): n = max(n, 2)
    return n

def worst(p):
    if p.kind == "mfma": return 8
    if p.kind in VALUK: return 2
    if p.kind == "salu" and (("m0", 0) in p.w or ("exec", 0) in p.w): return 1
    if p.store_data: return 2
    return 0

class Gen:
    def __init__(self):
        self.lines = []
        self.hist = []
        self.nops = 0
        self.uid = 0
    def _age(self, k):
        for p in self.hist: p.dist += k
        self.hist = [p for p in self.hist if p.dist < 8]
    def _nop(self, k):
        while k > 0:
            n = min(k, 16)
            self.lines.append(f"    s_nop {n-1}")
            self._age(n); self.nops += n; k -= n
    def I(self, text):
        c = parse(text)
        if c.mn.startswith(("s_branch", "s_cbranch", "s_call", "s_setpc", "s_swappc")):
            k = max([worst(p) - p.dist - 1 for p in self.hist] + [0])
            k = max(k, max([need(p, c) - p.dist for p in self.hist] + [0]))
            self._nop(k)
        else:
            k = max([need(p, c) - p.dist for p in self.hist] + [0])
            self._nop(k)
        self.lines.append("    " + text)
        m = re.match(r"s_nop\s+(\d+)", text)
        self._age(int(m.group(1)) + 1 if m else 1)
        self.hist.append(c)
    def L(self, name):
        self.lines.append(name + ":")
    def C(self, text):
        self.lines.append("    ; " + text)
    def raw(self, text):
        self.lines.append(text)
    def newlabel(self, p="L"):
        self.uid += 1
        return f"{p}_{self.uid}"
    def text(self):
        return "\n".join(self.lines) + "\n"

def vr(b, n=4, k="v"):
    return f"{k}{b}" if n == 1 else f"{k}[{b}:{b+n-1}]"
def sr(b, n=2):
    return f"s{b}" if n == 1 else f"s[{b}:{b+n-1}]"
```

```python
import sys, os
sys.path.insert(0, os.path.dirname(__file__))
from asmlib import *

NAME = "interleave_layers__gqa_block_cached__gqa_block_cached__decode"
P = dict(PACE1=12, PACE5=11, PACEV=7, STAMP=0, SPIN=1 << 18, TPACE=1, NTOUCH=10)
for a in sys.argv[2:]:
    k, v = a.split("="); P[k] = int(v, 0)

BLK_LDS = 36864
MISC = 4 * BLK_LDS
PART, MLL, QL, OBL, XL, PFL, QFL, MDL = 0, 8192, 8320, 10112, 10368, 11392, 11408, 11412
STG = 2 * BLK_LDS
WS_O, WS_ML, WS_Y, WS_Q, WS_ST = 0, 0x200000, 0x208000, 0x348000, 0x4c8000
NCLR = 20
WS_CLR_END = 256 * NCLR * 1024
WS_Q0, WS_ST0, WS_CS = 0x500000, 0x580000, 0x5c0000
WS_STAMP = 0x790000
WS_SIZE = 0x800000
assert WS_Y + 16 * 8 * 10240 <= WS_Q and WS_Q + 12 * 32 * 4096 <= WS_ST and WS_ST + 12 * 2048 <= WS_CLR_END
CSL = 11456

sWAVE, sCHUNK, sH, sI, sB = 3, 4, 5, 6, 7
SRD = {"KA": 8, "VA": 12, "KB": 16, "VB": 20}
sWS, sDBG, sOUT, sTMPD = 24, 28, 32, 84
MB, MT = 62, 70
sRET, sRET2 = 78, 80
sLOG2E, sSCALE = 82, 83
(sW, sLDS, sBASE, sOFF, sTOFF, sTC, sNEED, sSPIN, sLIM, sSEQ, sT0, sT1, sT2, sQA, sLB, sPL, sN, sSTI, sT3, sQF, sMODE, sDLY, sTP, sTHR) = range(36, 60)
sST = 88
sPCB = 90

vKOFF, vVOFF, vLIN, vTOUCH, vMISC, vDUMMY, vPART = 0, 1, 2, 3, 4, 5, 6
vNM, vM0 = 7, 8
vS = 12
vL = 15
vACC = 16
vAQ = 20
vD = 36
vT, vADDR = 44, 45
vSTAMP, vF = 46, 47
vLT = 48

g = Gen()
I, L, C = g.I, g.L, g.C

def stamp(tag):
    if not P["STAMP"]: return
    C(f"stamp {tag}")
    I(f"s_memrealtime {sr(sST)}")
    I("s_waitcnt lgkmcnt(0)")
    I(f"s_mov_b32 m0, s{sSTI}")
    I(f"v_writelane_b32 v{vSTAMP}, s{sST}, m0")
    I(f"s_add_u32 s{sSTI}, s{sSTI}, 1")
    I(f"s_and_b32 s{sSTI}, s{sSTI}, 63")

def srd(d, lo, nbytes):
    I(f"s_mov_b32 s{d}, s{lo}"); I(f"s_and_b32 s{d+1}, s{lo+1}, 0xffff")
    I(f"s_mov_b32 s{d+2}, {nbytes:#x}"); I(f"s_mov_b32 s{d+3}, 0x20000")

def spin_tail(loop):
    I(f"s_add_u32 s{sSPIN}, s{sSPIN}, 1")
    I(f"s_cmp_lt_u32 s{sSPIN}, s{sLIM}")
    I(f"s_cbranch_scc1 {loop}")
    I(f"s_mov_b32 s{sLIM}, 0")

def dpp(op, d, a, b, ctl, rm=0xf, bm=0xf):
    if b is None:
        I(f"{op}_dpp v{d}, v{a} {ctl} row_mask:{rm:#x} bank_mask:{bm:#x}")
    else:
        I(f"{op}_dpp v{d}, v{a}, v{b} {ctl} row_mask:{rm:#x} bank_mask:{bm:#x}")

RED = [("quad_perm:[1,0,3,2]", 0xf), ("quad_perm:[2,3,0,1]", 0xf), ("row_half_mirror", 0xf), ("row_mirror", 0xf), ("row_bcast:15", 0xa), ("row_bcast:31", 0xc)]
def wave_reduce(op, regs, steps=RED):
    for ctl, rm in steps:
        for r in regs:
            dpp(op, r, r, r, ctl, rm)

def bf16_round2(a, b, t):
    I(f"v_cvt_pk_bf16_f32 v{t}, v{a}, v{b}")
    I(f"v_lshlrev_b32 v{a}, 16, v{t}")
    if b != a: I(f"v_and_b32 v{b}, 0xffff0000, v{t}")

BLKS = ["KA", "VA", "KB", "VB"]
def data_units():
    pool = [("a", 16 * k) for k in range(16)] + [("v", 64 + 16 * k) for k in range(12)]
    m = {}
    for bi, b in enumerate(BLKS):
        m[b] = [("l", s) for s in range(3)] + pool[7 * bi: 7 * bi + 7]
    return m
DU = data_units()
WO = {"A": 64, "B": 144}
WQ = {"A": 0, "B": 80}
cpool = [("v", 224), ("v", 240)] + [("a", 160 + 16 * k) for k in range(6)]
CU = {b: cpool[2 * bi: 2 * bi + 2] for bi, b in enumerate(BLKS)}

def pace_wait():
    lab = g.newlabel("Lp")
    L(lab)
    I(f"s_getreg_b32 s{sT0}, hwreg(HW_REG_IB_STS)")
    I(f"s_and_b32 s{sT0}, s{sT0}, 0xc0000f")
    I(f"s_cmp_gt_u32 s{sT0}, s{sTHR}")
    I(f"s_cbranch_scc1 {lab}")

def issue_unit(blk, loc, pace):
    isK = blk[0] == "K"
    if loc[0] == "l":
        I(f"s_add_u32 m0, s{sLDS}, {BLKS.index(blk) * BLK_LDS + loc[1] * 4096}")
    for t in range(4):
        if pace == "dyn":
            if t % P.get("PG", 1) == 0: pace_wait()
        elif pace: I(f"s_waitcnt vmcnt({pace - 1})")
        if loc[0] == "l":
            I(f"buffer_load_dwordx4 v{vKOFF if isK else vLIN}, {sr(SRD[blk], 4)}, s{sOFF} offen offset:{t * 1024} nt lds")
        else:
            I(f"buffer_load_dwordx4 {vr(loc[1] + 4 * t, 4, loc[0])}, v{vKOFF if isK else vVOFF}, {sr(SRD[blk], 4)}, s{sOFF} offen offset:{t * (1024 if isK else 256)} nt")

def issue_phase(ty):
    lead = P.get("LEAD", 2)
    seq = [("K" + ty, j) for j in range(lead)]
    for j in range(10):
        if j + lead < 10: seq.append(("K" + ty, j + lead))
        seq.append(("V" + ty, j))
    lastk = 0
    I(f"ds_read_b32 v{vF}, v{vMISC} offset:{QFL}")
    for blk, j in seq:
        if blk[0] == "K": lastk = j
        tail = blk[0] == "V" and j + lead >= 10
        I("s_waitcnt lgkmcnt(0)")
        I(f"v_readfirstlane_b32 s{sT1}, v{vF}")
        I(f"ds_read_b32 v{vF}, v{vMISC} offset:{QFL}")
        if tail: I(f"s_mov_b32 s{sTHR}, {P['PACEV'] - 1}")
        else: I(f"s_cmp_gt_u32 s{sTP}, {lastk}"); I(f"s_cselect_b32 s{sTHR}, {P['PACE1'] - 1}, {P['PACEV'] - 1}")
        I(f"s_cmp_ge_u32 s{sT1}, s{sNEED}"); I(f"s_cselect_b32 s{sTHR}, {P.get('PACED', 15) - 1}, s{sTHR}")
        I(f"s_add_u32 s{sOFF}, s{sBASE}, {j * 12288}")
        issue_unit(blk, DU[blk][j], "dyn")
    I("s_waitcnt lgkmcnt(0)")

def lds_rd(blk, slot, t):
    isK = blk[0] == "K"
    I(f"ds_read_b128 {vr(vLT + 4 * t)}, v{vADDR} offset:{slot * 4096 + t * (1024 if isK else 256)}")

def kpass(name, blk, units, order):
    n = len(units); nS = (n + 3) // 4
    lds = [k for k in order if units[k][0] == "l"]
    L(name)
    I(f"v_and_b32 v{vT}, 0xff, v{vKOFF}")
    I(f"v_add_u32 v{vT}, s{sQA}, v{vT}")
    I(f"ds_read_b128 {vr(vD + 4)}, v{vT}")
    if lds:
        I(f"s_add_u32 s{sT0}, s{sLDS}, {BLKS.index(blk) * BLK_LDS}")
        I(f"v_add_u32 v{vADDR}, s{sT0}, v{vLIN}")
        for t in range(4): lds_rd(blk, units[lds[0]][1], t)
    if n % 4: I(f"v_mov_b32 v{vS + nS - 1}, 0xff800000")
    I(f"s_waitcnt lgkmcnt({4 if lds else 0})")
    for t in range(4):
        for r in range(4):
            I(f"v_cndmask_b32 v{vAQ + 4 * t + r}, 0, v{vD + 4 + r}, {sr(MT + 2 * t)}")
    def post(k, d):
        return [lambda: dpp("v_mov_b32", vT, d, None, "quad_perm:[0,0,0,0]"),
                lambda: dpp("v_add_f32", vT, d + 1, vT, "quad_perm:[1,1,1,1]"),
                lambda: dpp("v_add_f32", vT, d + 2, vT, "quad_perm:[2,2,2,2]"),
                lambda: dpp("v_add_f32", vT, d + 3, vT, "quad_perm:[3,3,3,3]"),
                lambda: I(f"v_cndmask_b32 v{vS + k // 4}, v{vS + k // 4}, v{vT}, {sr(MB + 2 * (k % 4))}")]
    pend = []
    for pos, k in enumerate(order):
        d = vD + 4 * (pos % 2)
        loc = units[k]
        if loc[0] == "l": I("s_waitcnt lgkmcnt(0)")
        nxt = lds[lds.index(k) + 1] if (loc[0] == "l" and lds.index(k) + 1 < len(lds)) else None
        for t in range(4):
            src = vr(vLT + 4 * t) if loc[0] == "l" else vr(loc[1] + 4 * t, 4, loc[0])
            I(f"v_mfma_f32_16x16x32_bf16 {vr(d)}, {vr(vAQ + 4 * t)}, {src}, {'0' if t == 0 else vr(d)}")
            if nxt is not None: lds_rd(blk, units[nxt][1], t)
        for f in pend: f()
        pend = post(k, d)
    for f in pend: f()
    S = [vS + j for j in range(nS)]
    def rnd():
        for j in range(0, nS, 2):
            bf16_round2(S[j], S[min(j + 1, nS - 1)], vT)
    rnd()
    for s_ in S: I(f"v_mul_f32 v{s_}, s{sSCALE}, v{s_}")
    rnd()
    if nS == 3: I(f"v_max3_f32 v{vT}, v{S[0]}, v{S[1]}, v{S[2]}")
    else: I(f"v_mov_b32 v{vT}, v{S[0]}")
    wave_reduce("v_max_f32", [vT])
    I(f"v_readlane_b32 s{sT0}, v{vT}, 63")
    I(f"v_mov_b32 v{vNM}, s{sT0}")
    I(f"v_mul_f32 v{vNM}, s{sLOG2E}, v{vNM}")
    for s_ in S: I(f"v_fma_f32 v{s_}, v{s_}, s{sLOG2E}, -v{vNM}")
    for s_ in S: I(f"v_exp_f32 v{s_}, v{s_}")
    if nS == 3:
        I(f"v_add_f32 v{vL}, v{S[0]}, v{S[1]}"); I(f"v_add_f32 v{vL}, v{vL}, v{S[2]}")
    else:
        I(f"v_mov_b32 v{vL}, v{S[0]}")
    for s_ in S: I(f"v_cvt_pk_bf16_f32 v{s_}, v{s_}, v{s_}")
    I(f"s_setpc_b64 {sr(sRET)}")

def vpass(name, blk, units, order, split=None):
    lds = [k for k in order if units[k][0] == "l"]
    L(name)
    if lds:
        I(f"s_add_u32 s{sT0}, s{sLDS}, {BLKS.index(blk) * BLK_LDS}")
        I(f"v_add_u32 v{vADDR}, s{sT0}, v{vVOFF}")
        for t in range(4): lds_rd(blk, units[lds[0]][1], t)
    seq = [(k, u) for k in order for u in range(4)]
    def mkA(idx):
        k, u = seq[idx]
        a = vAQ + 4 * (idx % 2)
        for r in range(4):
            dpp("v_and_b32", a + r, vS + k // 4, vM0 + r, f"row_newbcast:{4 * u + k % 4}")
    red = list(RED)
    mkA(0)
    for idx, (k, u) in enumerate(seq):
        if split is not None and idx == 4 * split:
            I(f"s_setpc_b64 {sr(sRET)}")
            L(name + "2")
        if idx + 1 < len(seq): mkA(idx + 1)
        if red and idx % 1 == 0 and idx >= 1:
            ctl, rm = red.pop(0); dpp("v_add_f32", vL, vL, vL, ctl, rm)
        loc = units[k]
        if loc[0] == "l" and u == 0: I("s_waitcnt lgkmcnt(0)")
        src = vr(vLT + 4 * u) if loc[0] == "l" else vr(loc[1] + 4 * u, 4, loc[0])
        I(f"v_mfma_f32_16x16x32_bf16 {vr(vACC)}, {vr(vAQ + 4 * (idx % 2))}, {src}, {'0' if idx == 0 else vr(vACC)}")
        if loc[0] == "l" and lds.index(k) + 1 < len(lds):
            lds_rd(blk, units[lds[lds.index(k) + 1]][1], u)
    assert not red
    I(f"v_add_u32 v{vT}, s{sPL}, v{vPART}")
    I(f"s_lshr_b32 s{sT0}, s{sPL}, 6")
    I(f"v_add_u32 v{vADDR}, s{sT0}, v{vMISC}")
    I(f"v_mov_b32 v{vD}, v{vNM}")
    I(f"v_mov_b32 v{vD + 1}, v{vL}")
    I(f"v_mov_b32 v{vD + 2}, 1")
    I(f"s_lshr_b32 s{sT0}, s{sPL}, 11"); I(f"s_lshl_b32 s{sT0}, s{sT0}, 2")
    I(f"v_add_u32 v{vD + 3}, s{sT0}, v{vMISC}")
    I("s_mov_b32 exec_hi, 0")
    I(f"ds_write_b128 v{vT}, {vr(vACC)}")
    I("s_mov_b32 exec_hi, 0x80000000"); I("s_mov_b32 exec_lo, 0")
    I(f"ds_write_b64 v{vADDR}, {vr(vD, 2)} offset:{MLL}")
    I(f"ds_add_rtn_u32 v{vD + 2}, v{vD + 3}, v{vD + 2} offset:{PFL}")
    I("s_mov_b64 exec, -1")
    I("s_branch S_A")

def call(name): I(f"s_call_b64 {sr(sRET)}, {name}")

def touch(blk):
    lab = g.newlabel("Ltch")
    I(f"s_cmp_ge_u32 s{sTC}, s{sT3}")
    I(f"s_cbranch_scc1 {lab}")
    I(f"buffer_load_dword v{vDUMMY}, v{vTOUCH}, {sr(SRD[blk], 4)}, s{sTOFF} offen")
    I(f"s_add_u32 s{sTOFF}, s{sTOFF}, 12288")
    I(f"s_add_u32 s{sTC}, s{sTC}, 1")
    L(lab)

def wait_q(blk):
    lp, sk, dn = g.newlabel("Lwq"), g.newlabel("Lsk"), g.newlabel("Ldn")
    I(f"s_mov_b32 s{sSPIN}, 0")
    L(lp)
    I(f"ds_read_b32 v{vF}, v{vMISC} offset:{QFL}")
    if blk:
        I(f"s_cmp_ge_u32 s{sTC}, s{sT3}")
        I(f"s_cbranch_scc1 {sk}")
        I(f"s_getreg_b32 s{sT0}, hwreg(HW_REG_IB_STS)")
        I(f"s_and_b32 s{sT0}, s{sT0}, 0xc0000f")
        I(f"s_cmp_gt_u32 s{sT0}, {P['TPACE']}")
        I(f"s_cbranch_scc1 {sk}")
        I(f"buffer_load_dword v{vDUMMY}, v{vTOUCH}, {sr(SRD[blk], 4)}, s{sTOFF} offen")
        I(f"s_add_u32 s{sTOFF}, s{sTOFF}, 12288")
        I(f"s_add_u32 s{sTC}, s{sTC}, 1")
        L(sk)
    I("s_waitcnt lgkmcnt(0)")
    I(f"v_readfirstlane_b32 s{sT0}, v{vF}")
    I(f"s_cmp_ge_u32 s{sT0}, s{sNEED}")
    I(f"s_cbranch_scc1 {dn}")
    spin_tail(lp)
    L(dn)

def set_part(Lr):
    I(f"s_lshl_b32 s{sPL}, s{sWAVE}, 9")
    I(f"s_add_u32 s{sPL}, s{sPL}, {Lr * 2048}")
    I(f"s_lshl_b32 s{sN}, s{sB}, 2")
    if Lr == 3: I(f"s_sub_u32 s{sN}, s{sN}, 1")
    elif Lr: I(f"s_add_u32 s{sN}, s{sN}, {Lr}")

def dump_stamps():
    if not P["STAMP"]: return
    I(f"s_lshl_b32 s{sT0}, s2, 2"); I(f"s_add_u32 s{sT0}, s{sT0}, s{sWAVE}"); I(f"s_lshl_b32 s{sT0}, s{sT0}, 8")
    I(f"s_add_u32 s{sT0}, s{sT0}, {WS_STAMP}")
    I(f"v_lshrrev_b32 v{vT}, 2, v{vLIN}")
    I(f"buffer_store_dword v{vSTAMP}, v{vT}, {sr(sWS, 4)}, s{sT0} offen")

L(f"{NAME}_kernel")
I("s_cmp_ge_u32 s2, 256")
I("s_cbranch_scc1 L_exit")
I(f"s_getpc_b64 {sr(sPCB)}")
I("s_load_dwordx16 s[36:51], s[0:1], 0")
I("s_load_dwordx8 s[52:59], s[0:1], 64")
I("s_load_dwordx2 s[60:61], s[0:1], 96")
I("v_lshrrev_b32 v7, 6, v0")
I("v_and_b32 v12, 63, v0")
I(f"v_readfirstlane_b32 s{sWAVE}, v7")
I(f"v_lshlrev_b32 v{vLIN}, 4, v12")
I(f"v_lshlrev_b32 v{vTOUCH}, 6, v12")
I("v_lshrrev_b32 v13, 4, v12")
I("v_and_b32 v14, 15, v12")
I(f"v_lshlrev_b32 v{vVOFF}, 4, v14")
I(f"v_lshl_add_u32 v{vVOFF}, v13, 10, v{vVOFF}")
I("v_and_b32 v15, 3, v12")
I(f"v_lshlrev_b32 v{vKOFF}, 4, v15")
I(f"v_lshl_add_u32 v{vKOFF}, v13, 6, v{vKOFF}")
I("v_bfe_u32 v15, v12, 2, 2")
I(f"v_lshl_add_u32 v{vKOFF}, v15, 8, v{vKOFF}")
I(f"v_mov_b32 v{vMISC}, {MISC:#x}")
I(f"v_lshlrev_b32 v{vPART}, 5, v14")
I(f"v_lshl_add_u32 v{vPART}, v13, 4, v{vPART}")
I(f"v_add_u32 v{vPART}, {MISC + PART:#x}, v{vPART}")
I(f"s_and_b32 s{sCHUNK}, s2, 7"); I(f"s_lshl_b32 s{sCHUNK}, s{sCHUNK}, 5"); I(f"s_lshr_b32 s{sH}, s2, 3"); I(f"s_add_u32 s{sCHUNK}, s{sCHUNK}, s{sH}")
I(f"s_lshr_b32 s{sH}, s{sCHUNK}, 3"); I(f"s_and_b32 s{sI}, s{sCHUNK}, 7")
I("v_mov_b32 v16, 0")
I(f"v_lshl_add_u32 v17, v7, 2, v{vMISC}")
I(f"ds_write_b32 v17, v16 offset:{PFL}")
I(f"ds_write_b32 v{vMISC}, v16 offset:{QFL}")
I(f"ds_write_b32 v17, v16 offset:{PFL + 32}")
I("v_and_b32 v15, 1, v12"); I("v_lshlrev_b32 v15, 4, v15"); I("v_mov_b32 v16, 0xffff"); I("v_lshlrev_b32 v16, v15, v16")
I("v_lshrrev_b32 v15, 1, v14")
for r in range(4):
    I(f"v_cmp_eq_u32 vcc, {r}, v15")
    I(f"v_cndmask_b32 v{vM0 + r}, 0, v16, vcc")
for k in range(4):
    I(f"s_mov_b32 s{MB + 2 * k}, {0x11111111 << k:#x}"); I(f"s_mov_b32 s{MB + 2 * k + 1}, {0x11111111 << k:#x}")
    I(f"s_mov_b32 s{MT + 2 * k}, {0x000f000f << (4 * k):#x}"); I(f"s_mov_b32 s{MT + 2 * k + 1}, {0x000f000f << (4 * k):#x}")
I(f"s_mov_b32 s{sLOG2E}, 0x3fb8aa3b"); I(f"s_mov_b32 s{sSCALE}, 0x3db504f3")
I(f"v_mov_b32 v{vSTAMP}, 0")
I("s_waitcnt lgkmcnt(0)")
srd(SRD["KA"], 38, 1 << 27); srd(SRD["VA"], 40, 1 << 27); srd(SRD["KB"], 48, 1 << 27); srd(SRD["VB"], 50, 1 << 27)
srd(sWS, 60, WS_SIZE); srd(sDBG, 58, 256); srd(sOUT, 56, 5120)
I("s_mov_b64 s[92:93], s[36:37]"); I("s_mov_b64 s[94:95], s[42:43]"); I("s_mov_b64 s[96:97], s[44:45]")
I("s_mov_b64 s[98:99], s[52:53]"); I("s_mov_b64 s[100:101], s[54:55]")
I(f"s_mov_b32 s{sLIM}, {P['SPIN']}"); I(f"s_mov_b32 s{sSEQ}, 0"); I(f"s_mov_b32 s{sB}, 0"); I(f"s_mov_b32 s{sSTI}, 0")
I(f"s_lshl_b32 s{sW}, s{sCHUNK}, 17")
I(f"s_cmp_eq_u32 s{sWAVE}, 0")
I("s_cbranch_scc1 L_chain")

KORD = [3, 4, 0, 5, 6, 1, 7, 8, 2, 9]
VORD = [3, 0, 4, 5, 1, 6, 7, 2, 8, 9]
I(f"s_sub_u32 s{sT0}, s{sWAVE}, 1")
I(f"s_lshl_b32 s{sT1}, s{sT0}, 12"); I(f"s_add_u32 s{sW}, s{sW}, s{sT1}")
I(f"s_mul_i32 s{sLDS}, s{sT0}, 12288"); I(f"s_mov_b32 s{sTC}, 0")
I("s_barrier")
stamp("start")
L("L_dloop")
I(f"s_lshl_b32 s{sBASE}, s{sB}, 25"); I(f"s_add_u32 s{sBASE}, s{sBASE}, s{sW}")
I(f"s_mov_b32 s{sTP}, s{sTC}")
I(f"s_mov_b32 s{sTOFF}, s{sBASE}"); I(f"s_mov_b32 s{sTC}, 0"); I(f"s_mov_b32 s{sT3}, {P['NTOUCH']}")
I(f"s_cmp_eq_u32 s{sB}, 4")
I(f"s_cselect_b32 s{sT3}, 0, s{sT3}")
I("s_cbranch_scc1 L_dL4")
C("P1: issue A[b]")
I(f"s_lshl_b32 s{sNEED}, s{sB}, 2"); I(f"s_add_u32 s{sNEED}, s{sNEED}, 4")
issue_phase("A")
stamp("P1 done")
touch("KB"); touch("KB")
I(f"s_waitcnt vmcnt({4 * (P.get('LEAD', 2) + 1) + 2})")
I(f"s_lshl_b32 s{sNEED}, s{sB}, 2"); I(f"s_add_u32 s{sNEED}, s{sNEED}, 3")
I(f"s_cmp_eq_u32 s{sB}, 0"); I(f"s_cselect_b32 s{sNEED}, 1, s{sNEED}")
wait_q("KB")
I(f"ds_read_b32 v{vF}, v{vMISC} offset:{MDL}")
touch("KB")
I("s_waitcnt lgkmcnt(0)")
I(f"v_readfirstlane_b32 s{sMODE}, v{vF}")
I(f"s_lshl_b32 s{sQA}, s{sB}, 8"); I(f"s_add_u32 s{sQA}, s{sQA}, {MISC + QL}")
set_part(0)
stamp("L1 begin")
call("S_kA"); touch("KB")
I("s_waitcnt vmcnt(4)")
call("S_vA")
if P.get("TX", 0): touch("KB")
stamp("L1 end")
L("L_dL4")
I(f"s_lshl_b32 s{sNEED}, s{sB}, 2"); I(f"s_add_u32 s{sNEED}, s{sNEED}, 4")
I(f"s_min_u32 s{sNEED}, s{sNEED}, 19")
wait_q("KB")
I(f"s_cmp_eq_u32 s{sB}, 0")
I("s_cbranch_scc1 L_dP5")
touch("KB")
I(f"s_mov_b32 s{sQA}, {MISC + QL + 6 * 256}")
set_part(3)
stamp("L4 begin")
call("S_kB"); touch("KB"); call("S_vB"); call("S_vB2")
stamp("L4 end")
I(f"s_cmp_eq_u32 s{sB}, 4")
I("s_cbranch_scc1 L_done")
L("L_dP5")
C("P5: issue B[b]")
I(f"s_mov_b32 s{sTP}, s{sTC}")
I(f"s_add_u32 s{sNEED}, s{sNEED}, 1")
issue_phase("B")
stamp("P5 done")
I(f"s_add_u32 s{sTOFF}, s{sBASE}, {1 << 25}"); I(f"s_mov_b32 s{sTC}, 0")
I(f"s_cmp_eq_u32 s{sB}, 3"); I(f"s_cselect_b32 s{sT3}, 0, s{sT3}")
I("s_cbranch_scc1 L_dlastB")
touch("KA"); touch("KA")
I(f"s_lshl_b32 s{sNEED}, s{sB}, 2"); I(f"s_add_u32 s{sNEED}, s{sNEED}, 5")
wait_q("KA")
I(f"s_mov_b32 s{sQA}, {MISC + QL + 4 * 256}")
set_part(1)
stamp("L2 begin")
I(f"s_waitcnt vmcnt({4 * (P.get('LEAD', 2) + 1) + 2})")
call("S_kB"); touch("KA")
I("s_waitcnt vmcnt(11)")
call("S_vB")
I("s_waitcnt vmcnt(3)")
call("S_vB2")
I("s_branch L_dL3")
L("L_dlastB")
I(f"s_lshl_b32 s{sNEED}, s{sB}, 2"); I(f"s_add_u32 s{sNEED}, s{sNEED}, 5")
wait_q(None)
I(f"s_mov_b32 s{sQA}, {MISC + QL + 4 * 256}")
set_part(1)
stamp("L2 begin")
I(f"s_waitcnt vmcnt({4 * (P.get('LEAD', 2) + 1)})")
call("S_kB")
I("s_waitcnt vmcnt(8)")
call("S_vB")
I("s_waitcnt vmcnt(0)")
call("S_vB2")
L("L_dL3")
stamp("L2 end")
I(f"s_add_u32 s{sNEED}, s{sNEED}, 1")
wait_q("KA")
I(f"s_mov_b32 s{sQA}, {MISC + QL + 5 * 256}")
set_part(2)
stamp("L3 begin")
call("S_kA"); call("S_vA")
stamp("L3 end")
I(f"s_add_u32 s{sB}, s{sB}, 1")
I("s_branch L_dloop")
L("L_done")
dump_stamps()
L("L_exit")
I("s_endpgm")

kpass("S_kA", "KA", DU["KA"], KORD)
vpass("S_vA", "VA", DU["VA"], VORD)
kpass("S_kB", "KB", DU["KB"], KORD)
vpass("S_vB", "VB", DU["VB"], VORD, split=8)

G0 = 20
cT = [60, 61, 62, 63]
vX = 3
vST2 = 5

def cstamp(tag, fine=False, val=None):
    global vSTAMP
    if fine and P["STAMP"] != 2: return
    if not P["STAMP"]: return
    lab = None
    if P["STAMP"] == 2 and tag != "start":
        lab = g.newlabel("Lst")
        I(f"s_cmp_lt_u32 s{sB}, {P.get('SB', 3)}"); I(f"s_cbranch_scc1 {lab}")
        I(f"s_cmp_gt_u32 s{sB}, {P.get('SBE', 4)}"); I(f"s_cbranch_scc1 {lab}")
    old = vSTAMP; vSTAMP = vST2; stamp(tag)
    if val is not None:
        I(f"s_mov_b32 m0, s{sSTI}"); I(f"v_writelane_b32 v{vSTAMP}, s{val}, m0"); I(f"s_add_u32 s{sSTI}, s{sSTI}, 1"); I(f"s_and_b32 s{sSTI}, s{sSTI}, 63")
    vSTAMP = old
    if lab: L(lab)

def row_stores(stores):
    l1, l2 = g.newlabel("Lrs"), g.newlabel("Lrs")
    I(f"s_cmp_eq_u32 s{sMODE}, 0")
    I(f"s_cbranch_scc1 {l1}")
    for t in stores: I(t)
    I(f"s_branch {l2}")
    L(l1)
    for t in stores: I(t + (" sc1" if t.startswith("buffer_store") else ""))
    L(l2)

def check_sentinel(regs, t, loop, done):
    regs = list(regs)
    I(f"v_max3_u32 v{t}, v{regs[0]}, v{regs[1]}, v{regs[2]}")
    k = 3
    while k < len(regs):
        if k + 1 < len(regs): I(f"v_max3_u32 v{t}, v{t}, v{regs[k]}, v{regs[k + 1]}"); k += 2
        else: I(f"v_max_u32 v{t}, v{t}, v{regs[k]}"); k += 1
    I(f"v_cmp_eq_u32 vcc, -1, v{t}")
    I(f"s_cbranch_vccz {done}")
    if P.get("PSL", 0): I(f"s_sleep {P['PSL']}")
    spin_tail(loop)
    L(done)
    cstamp("ok", fine=True, val=sSPIN)

def step_A():
    L("S_A")
    a1, ml, lo = vT, vADDR, vD + 4
    M_, O_ = vAQ, vAQ + 8
    I(f"s_and_b32 s{sT0}, s{sPL}, 0x1800"); I(f"s_add_u32 s{sT1}, s{sT0}, {MISC + PART}")
    I(f"v_lshrrev_b32 v{lo}, 1, v{vLIN}")
    I(f"v_add_u32 v{a1}, s{sT1}, v{lo}")
    I(f"s_lshr_b32 s{sT0}, s{sT0}, 6")
    I(f"v_add_u32 v{ml}, s{sT0}, v{vMISC}")
    I(f"ds_read_b128 {vr(M_)}, v{ml} offset:{MLL}")
    I(f"ds_read_b128 {vr(M_ + 4)}, v{ml} offset:{MLL + 16}")
    for k in range(4): I(f"ds_read_b64 {vr(O_ + 2 * k, 2)}, v{a1} offset:{k * 512}")
    I(f"s_lshl_b32 s{sT1}, s{sN}, 17"); I(f"s_lshl_b32 s{sT2}, s{sCHUNK}, 9"); I(f"s_add_u32 s{sT1}, s{sT1}, s{sT2}")
    I(f"s_lshr_b32 s{sT2}, s{sT1}, 6"); I(f"s_add_u32 s{sT2}, s{sT2}, {WS_ML}")
    I("s_waitcnt lgkmcnt(6)")
    I(f"v_readlane_b32 s{sT0}, v{vD + 2}, 63")
    I(f"s_and_b32 s{sT0}, s{sT0}, 3")
    I(f"s_cmp_eq_u32 s{sT0}, 3")
    I("s_cbranch_scc1 S_A_ok")
    I("s_waitcnt lgkmcnt(0)")
    I(f"s_setpc_b64 {sr(sRET)}")
    L("S_A_ok")
    I("s_waitcnt lgkmcnt(4)")
    mx, lt = vD, vD + 1
    I(f"v_max3_f32 v{mx}, v{M_}, v{M_ + 2}, v{M_ + 4}")
    I(f"v_max_f32 v{mx}, v{mx}, v{M_ + 6}")
    for k in range(4): I(f"v_sub_f32 v{M_ + 2 * k}, v{M_ + 2 * k}, v{mx}")
    for k in range(4): I(f"v_exp_f32 v{M_ + 2 * k}, v{M_ + 2 * k}")
    I(f"v_mov_b32 v{vD + 2}, 1")
    I(f"v_mul_f32 v{lt}, v{M_}, v{M_ + 1}")
    for k in range(1, 4): I(f"v_fmac_f32 v{lt}, v{M_ + 2 * k}, v{M_ + 2 * k + 1}")
    I("s_waitcnt lgkmcnt(0)")
    for e in range(2): I(f"v_mul_f32 v{O_ + e}, v{M_}, v{O_ + e}")
    for k in range(1, 4):
        for e in range(2): I(f"v_fmac_f32 v{O_ + e}, v{M_ + 2 * k}, v{O_ + 2 * k + e}")
    row_stores([f"buffer_store_dwordx2 {vr(O_, 2)}, v{lo}, {sr(sWS, 4)}, s{sT1} offen",
                "s_mov_b64 exec, 1",
                f"buffer_store_dwordx2 {vr(mx, 2)}, v{lo}, {sr(sWS, 4)}, s{sT2} offen"])
    I(f"ds_add_u32 v{vD + 3}, v{vD + 2} offset:{PFL + 32}")
    I("s_mov_b64 exec, -1")
    I(f"s_setpc_b64 {sr(sRET)}")

def step_B():
    L("S_B")
    mo, wa, ra, t = cT[0], cT[1], cT[2], cT[3]
    I(f"s_lshl_b32 s{sT1}, s{sN}, 17"); I(f"s_lshl_b32 s{sT2}, s{sH}, 12"); I(f"s_add_u32 s{sT1}, s{sT1}, s{sT2}")
    I(f"s_lshr_b32 s{sT2}, s{sT1}, 6"); I(f"s_add_u32 s{sT2}, s{sT2}, {WS_ML}")
    I(f"v_and_b32 v{mo}, 0x30, v{vLIN}")
    I(f"v_lshrrev_b32 v{t}, 3, v{vLIN}")
    I(f"v_lshrrev_b32 v{wa}, 6, v{vLIN}")
    I(f"v_xor_b32 v{t}, v{t}, v{wa}")
    I(f"v_and_b32 v{t}, 8, v{t}")
    I(f"v_or_b32 v{mo}, v{mo}, v{t}")
    I(f"v_lshrrev_b32 v{wa}, 1, v{vLIN}"); I(f"v_and_b32 v{wa}, 0xf8, v{wa}")
    I(f"v_lshrrev_b32 v{t}, 7, v{vLIN}"); I(f"v_and_b32 v{t}, 4, v{t}")
    I(f"v_add3_u32 v{wa}, v{wa}, v{t}, v{vMISC}")
    I(f"v_lshrrev_b32 v{ra}, 4, v{vLIN}"); I(f"v_and_b32 v{ra}, 0x30, v{ra}")
    I(f"s_mov_b32 s{sSPIN}, 0")
    I(f"s_and_b32 s{sT0}, s{sN}, 3"); I(f"s_lshl_b32 s{sT0}, s{sT0}, 2"); I(f"v_add_u32 v{G0}, s{sT0}, v{vMISC}")
    I(f"s_lshr_b32 s{sT3}, s{sN}, 2")
    L("S_B_w")
    I(f"ds_read_b32 v{G0 + 1}, v{G0} offset:{PFL + 32}")
    I("s_waitcnt lgkmcnt(0)")
    I(f"v_readfirstlane_b32 s{sT0}, v{G0 + 1}")
    I(f"s_cmp_gt_u32 s{sT0}, s{sT3}")
    I("s_cbranch_scc1 S_B_go")
    spin_tail("S_B_w")
    L("S_B_go")
    cstamp("A seen", fine=True)
    I(f"s_mov_b32 s{sSPIN}, 0")
    ML_ = G0 + 16
    if P.get("PRE", 0): I("s_waitcnt vmcnt(0)"); I(f"s_sleep {P['PRE']}")
    L("S_B_lp")
    for j in range(4): I(f"buffer_load_dwordx4 {vr(G0 + 4 * j)}, v{vLIN}, {sr(sWS, 4)}, s{sT1} offen offset:{j * 1024} sc1")
    I(f"buffer_load_dwordx2 {vr(ML_, 2)}, v{mo}, {sr(sWS, 4)}, s{sT2} offen sc1")
    I("s_waitcnt vmcnt(0)")
    check_sentinel(range(G0, G0 + 18), t, "S_B_lp", "S_B_ok")
    I(f"v_mov_b32 v{t}, v{ML_}")
    wave_reduce("v_max_f32", [t], RED[:3])
    I(f"v_sub_f32 v{ML_}, v{ML_}, v{t}")
    I(f"v_exp_f32 v{ML_}, v{ML_}")
    I(f"v_mul_f32 v{t}, v{ML_}, v{ML_ + 1}")
    wave_reduce("v_add_f32", [t], RED[:3])
    I(f"v_rcp_f32 v{t}, v{t}")
    I(f"v_mul_f32 v{ML_}, v{ML_}, v{t}")
    ac = G0 + 20
    for j in range(4):
        for r in range(4):
            dpp("v_mul_f32" if j == 0 else "v_fmac_f32", ac + r, ML_, G0 + 4 * j + r, f"row_newbcast:{j}")
    I(f"v_permlane32_swap_b32 v{ac}, v{ac + 2}")
    I(f"v_permlane32_swap_b32 v{ac + 1}, v{ac + 3}")
    I(f"v_add_f32 v{ac}, v{ac}, v{ac + 2}"); I(f"v_add_f32 v{ac + 1}, v{ac + 1}, v{ac + 3}")
    I(f"v_cvt_pk_bf16_f32 v{ac}, v{ac}, v{ac + 1}")
    I(f"ds_write_b32 v{wa}, v{ac} offset:{OBL}")
    I(f"v_add_u32 v{t}, v{ra}, v{vMISC}")
    for kk in range(4): I(f"ds_read_b128 {vr(G0 + 4 * kk)}, v{t} offset:{OBL + kk * 64}")
    I(f"s_lshl_b32 s{sT1}, s{sN}, 3"); I(f"s_add_u32 s{sT1}, s{sT1}, s{sI}"); I(f"s_mul_i32 s{sT1}, s{sT1}, 10240"); I(f"s_add_u32 s{sT1}, s{sT1}, {WS_Y}")
    I(f"s_lshl_b32 s{sT2}, s{sH}, 6"); I(f"s_add_u32 s{sT2}, s{sT2}, s{sT1}"); I(f"s_add_u32 s{sT2}, s{sT2}, 8192")
    I(f"s_lshl_b32 s{sT0}, s{sH}, 8"); I(f"s_add_u32 s{sT1}, s{sT1}, s{sT0}")
    I(f"s_bitcmp1_b32 s{sN}, 0")
    I("s_cbranch_scc1 S_B_tB")
    D_ = G0 + 16
    for ty in "AB":
        if ty == "B": L("S_B_tB")
        for kk in range(4):
            I(f"s_waitcnt lgkmcnt({3 - kk})")
            for nt in range(5):
                I(f"v_mfma_f32_16x16x32_bf16 {vr(D_ + 4 * nt)}, {vr(WO[ty] + (nt * 4 + kk) * 4)}, {vr(G0 + 4 * kk)}, {'0' if kk == 0 else vr(D_ + 4 * nt)}")
        if ty == "A": I("s_branch S_B_st")
    L("S_B_st")
    I("s_mov_b32 exec_lo, 0x00010001"); I("s_mov_b32 exec_hi, 0x00010001")
    I("s_nop 4")
    for nt in range(4): I(f"buffer_store_dwordx4 {vr(D_ + 4 * nt)}, v{ra}, {sr(sWS, 4)}, s{sT1} offen offset:{nt * 64} sc1")
    I(f"buffer_store_dwordx4 {vr(D_ + 16)}, v{ra}, {sr(sWS, 4)}, s{sT2} offen sc1")
    I("s_mov_b64 exec, -1")
    I(f"s_setpc_b64 {sr(sRET)}")

def step_C():
    L("S_C")
    xa, t, xo = cT[0], cT[1], cT[2]
    I(f"s_lshl_b32 s{sT1}, s{sN}, 3"); I(f"s_add_u32 s{sT1}, s{sT1}, s{sI}"); I(f"s_mul_i32 s{sT1}, s{sT1}, 10240"); I(f"s_add_u32 s{sT1}, s{sT1}, {WS_Y}")
    I(f"s_add_u32 s{sT2}, s{sT1}, 4096"); I(f"s_add_u32 s{sT3}, s{sT1}, 8192")
    I(f"s_lshr_b32 s{sT0}, s{sN}, 2"); I(f"s_lshl_b32 s{sT0}, s{sT0}, 8"); I(f"s_add_u32 s{sT0}, s{sT0}, {MISC + XL}")
    I(f"v_lshrrev_b32 v{xa}, 2, v{vLIN}"); I(f"v_add_u32 v{xa}, s{sT0}, v{xa}")
    I(f"ds_read_b32 v{xo}, v{xa}")
    I(f"s_mov_b32 s{sSPIN}, 0")
    L("S_C_lp")
    I(f"s_mov_b32 s{sT0}, s{sDLY}")
    L("S_C_dl")
    I("s_sleep 2")
    I(f"s_sub_u32 s{sT0}, s{sT0}, 1"); I(f"s_cmp_gt_i32 s{sT0}, 0"); I("s_cbranch_scc1 S_C_dl")
    for j in range(10):
        I(f"buffer_load_dwordx4 {vr(G0 + 4 * j)}, v{vLIN}, {sr(sWS, 4)}, s{(sT1, sT2, sT3)[j // 4]} offen offset:{(j % 4) * 1024} sc1")
    I("s_waitcnt vmcnt(0)")
    check_sentinel(range(G0, G0 + 40), t, "S_C_lp", "S_C_ok")
    for a, b in ((0, 1), (2, 3), (4, 5), (6, 7), (8, 9), (0, 2), (4, 6), (0, 4)): padd(a, b)
    r, q = G0, G0 + 32
    for x in (q, r):
        I(f"v_permlane32_swap_b32 v{x}, v{x + 2}"); I(f"v_permlane32_swap_b32 v{x + 1}, v{x + 3}")
    for x in (q, r):
        I(f"v_add_f32 v{x}, v{x}, v{x + 2}"); I(f"v_add_f32 v{x + 1}, v{x + 1}, v{x + 3}")
    for x in (q, r): I(f"v_permlane16_swap_b32 v{x}, v{x + 1}")
    for x in (q, r): I(f"v_add_f32 v{x}, v{x}, v{x + 1}")
    dpp("v_add_f32", q, q, q, "row_ror:4"); dpp("v_add_f32", q, q, q, "row_ror:8")
    bf16_round2(r, q, t)
    I("s_waitcnt lgkmcnt(0)")
    I(f"v_lshlrev_b32 v{t}, 16, v{xo}"); I(f"v_and_b32 v{xo}, 0xffff0000, v{xo}")
    I(f"v_add_f32 v{r}, v{r}, v{t}"); I(f"v_add_f32 v{q}, v{q}, v{xo}")
    I(f"v_cvt_pk_bf16_f32 v{vX}, v{r}, v{q}")
    I(f"ds_write_b32 v{xa}, v{vX}")
    I(f"s_setpc_b64 {sr(sRET)}")

def step_D():
    L("S_D")
    x0, x1, p0, p1, s1, s2 = G0 + 16, G0 + 17, G0 + 18, G0 + 19, G0 + 20, G0 + 21
    A_, D_ = G0, G0 + 8
    I(f"v_lshlrev_b32 v{x0}, 16, v{vX}"); I(f"v_and_b32 v{x1}, 0xffff0000, v{vX}")
    I(f"v_cvt_pk_bf16_f32 v{p0}, v{x0}, v{x0}"); I(f"v_cvt_pk_bf16_f32 v{p1}, v{x1}, v{x1}")
    I(f"v_mul_f32 v{s2}, 0.5, v{x1}")
    I(f"v_fma_f32 v{s1}, 0.5, v{s2}, v{x0}")
    I(f"v_mul_f32 v{s2}, v{s2}, v{s2}")
    I(f"v_fmac_f32 v{s2}, v{x0}, v{x0}")
    def mkA(u):
        for r in range(4):
            dpp("v_and_b32", A_ + 4 * (u % 2) + r, p0 if u < 16 else p1, vM0 + r, f"row_newbcast:{u % 16}", bm=0x3)
    mkA(0)
    I(f"s_cmp_eq_u32 s{sT3}, 1")
    I("s_cbranch_scc1 S_D_tB")
    for ty in "AB":
        if ty == "B": L("S_D_tB")
        red = list(RED)
        for u in range(20):
            if u + 1 < 20: mkA(u + 1)
            if red:
                ctl, rm = red.pop(0); dpp("v_add_f32", s1, s1, s1, ctl, rm); dpp("v_add_f32", s2, s2, s2, ctl, rm)
            I(f"v_mfma_f32_16x16x32_bf16 {vr(D_)}, {vr(A_ + 4 * (u % 2))}, {vr(WQ[ty] + 4 * u, 4, 'a')}, {'0' if u == 0 else vr(D_)}")
        if ty == "A": I("s_branch S_D_st")
    L("S_D_st")
    I(f"v_mov_b32 v{x0}, 0")
    I("s_nop 5")
    row_stores(["s_mov_b32 exec_hi, 0",
                f"buffer_store_dwordx4 {vr(D_)}, v{vLIN}, {sr(sWS, 4)}, s{sT1} offen",
                "s_mov_b32 exec_hi, 0x80000000", "s_mov_b32 exec_lo, 0",
                f"buffer_store_dwordx2 {vr(s1, 2)}, v{x0}, {sr(sWS, 4)}, s{sT2} offen",
                "s_mov_b64 exec, -1"])
    I(f"s_setpc_b64 {sr(sRET)}")

def padd(a, b):
    for e in (0, 2): I(f"v_pk_add_f32 {vr(G0 + 4 * a + e, 2)}, {vr(G0 + 4 * a + e, 2)}, {vr(G0 + 4 * b + e, 2)}")

def fold4(r):
    I(f"v_permlane32_swap_b32 v{r}, v{r + 2}"); I(f"v_permlane32_swap_b32 v{r + 1}, v{r + 3}")
    I(f"v_add_f32 v{r}, v{r}, v{r + 2}"); I(f"v_add_f32 v{r + 1}, v{r + 1}, v{r + 3}")

def step_E():
    L("S_E")
    so, wa, t, cs = cT[0], cT[1], cT[2], G0 + 20
    I(f"v_lshrrev_b32 v{so}, 1, v{vLIN}")
    I(f"v_add3_u32 v{t}, v{so}, v{vMISC}, s{sT3}")
    I(f"ds_read_b64 {vr(cs, 2)}, v{t} offset:{CSL}")
    I(f"v_and_b32 v{so}, 0x38, v{so}")
    I(f"v_and_b32 v{wa}, 0xf0, v{vLIN}")
    I(f"v_lshrrev_b32 v{t}, 5, v{vLIN}"); I(f"v_and_b32 v{t}, 8, v{t}"); I(f"v_or_b32 v{wa}, v{wa}, v{t}")
    I(f"v_lshrrev_b32 v{t}, 7, v{vLIN}"); I(f"v_and_b32 v{t}, 4, v{t}"); I(f"v_add3_u32 v{wa}, v{wa}, v{t}, s{sQA}")
    I(f"s_mov_b32 s{sSPIN}, 0")
    S_ = G0 + 16
    L("S_E_lp")
    for j in range(4):
        I(f"buffer_load_dwordx4 {vr(G0 + 4 * j)}, v{vLIN}, {sr(sWS, 4)}, s{sT1} offen offset:{j * 1024} sc1")
    I(f"buffer_load_dwordx2 {vr(S_, 2)}, v{so}, {sr(sWS, 4)}, s{sT2} offen sc1")
    I("s_waitcnt vmcnt(0)")
    check_sentinel(range(G0, G0 + 18), t, "S_E_lp", "S_E_ok")
    pa = [(0, 1), (2, 3), (0, 2)]
    for k, (ctl, rm) in enumerate(RED[:3]):
        dpp("v_add_f32", S_, S_, S_, ctl, rm); dpp("v_add_f32", S_ + 1, S_ + 1, S_ + 1, ctl, rm)
        padd(*pa[k])
    I(f"v_mul_f32 v{S_}, 0x3acccccd, v{S_}")
    I(f"v_mul_f32 v{S_ + 1}, 0x3acccccd, v{S_ + 1}")
    r = G0
    I(f"v_fma_f32 v{S_ + 1}, -v{S_}, v{S_}, v{S_ + 1}")
    I(f"v_max_f32 v{S_ + 1}, 0, v{S_ + 1}")
    bf16_round2(S_, S_ + 1, t)
    I(f"v_add_f32 v{S_ + 1}, 0x3727c5ac, v{S_ + 1}")
    bf16_round2(S_ + 1, S_ + 1, t)
    I(f"v_sqrt_f32 v{S_ + 1}, v{S_ + 1}")
    fold4(r)
    bf16_round2(S_ + 1, S_ + 1, t)
    I(f"v_rcp_f32 v{S_ + 1}, v{S_ + 1}")
    I("s_waitcnt lgkmcnt(0)")
    I(f"v_fma_f32 v{r}, -v{S_}, v{cs}, v{r}"); I(f"v_fma_f32 v{r + 1}, -v{S_}, v{cs + 1}, v{r + 1}")
    I(f"v_mul_f32 v{r}, v{r}, v{S_ + 1}"); I(f"v_mul_f32 v{r + 1}, v{r + 1}, v{S_ + 1}")
    I(f"v_cvt_pk_bf16_f32 v{r}, v{r}, v{r + 1}")
    I(f"ds_write_b32 v{wa}, v{r}")
    I(f"s_setpc_b64 {sr(sRET)}")

def bumpQF():
    I(f"s_add_u32 s{sQF}, s{sQF}, 1")
    I(f"v_mov_b32 v{cT[0]}, s{sQF}")
    I(f"ds_write_b32 v{vMISC}, v{cT[0]} offset:{QFL}")

def own_issue(blks, bofs):
    I(f"s_add_u32 s{sBASE}, s{sB}, {bofs}"); I(f"s_lshl_b32 s{sBASE}, s{sBASE}, 25"); I(f"s_add_u32 s{sBASE}, s{sBASE}, s{sW}")
    for j in range(2):
        I(f"s_add_u32 s{sOFF}, s{sBASE}, {(30 + j) * 4096}")
        for blk in blks: issue_unit(blk, CU[blk][j], P.get("OWNP", 0))

def own_pass(ty, Lr, qslot_imm=None):
    if qslot_imm is not None: I(f"s_mov_b32 s{sQA}, {MISC + QL + qslot_imm * 256}")
    else: I(f"s_lshl_b32 s{sQA}, s{sB}, 8"); I(f"s_add_u32 s{sQA}, s{sQA}, {MISC + QL}")
    set_part(Lr)
    call(f"C_k{ty}"); call(f"C_v{ty}"); cstamp(f"own{Lr + 1}", fine=True)

def setn(Lr, bofs=0):
    I(f"s_lshl_b32 s{sN}, s{sB}, 2")
    k = Lr + 4 * bofs
    if k > 0: I(f"s_add_u32 s{sN}, s{sN}, {k}")
    if k < 0: I(f"s_sub_u32 s{sN}, s{sN}, {-k}")
def set_dly(Lr):
    fast, slow = P.get("DLYF", 5), P.get("DLYS", 14)
    if Lr == 1: I(f"s_mov_b32 s{sDLY}, {P.get('DLY2', fast)}")
    elif Lr == 0: I(f"s_mov_b32 s{sDLY}, {P.get('DLY1', 6)}")
    elif Lr == 2:
        I(f"s_cmp_ge_u32 s{sB}, 3"); I(f"s_cselect_b32 s{sDLY}, {fast}, {P.get('DLY3', 2)}")
    else:
        I(f"s_cmp_ge_u32 s{sB}, 4"); I(f"s_cselect_b32 s{sDLY}, {fast}, 1")
def pretouch(Lr, bofs=0):
    setn(Lr, bofs)
    I(f"v_lshlrev_b32 v{cT[0]}, 3, v{vLIN}")
    I(f"s_lshl_b32 s{sT1}, s{sN}, 17"); I(f"s_lshl_b32 s{sT2}, s{sH}, 12"); I(f"s_add_u32 s{sT1}, s{sT1}, s{sT2}")
    I(f"s_lshr_b32 s{sT2}, s{sT1}, 6"); I(f"s_add_u32 s{sT2}, s{sT2}, {WS_ML}")
    I("s_mov_b32 exec_hi, 0")
    I(f"buffer_load_dword v14, v{cT[0]}, {sr(sWS, 4)}, s{sT1} offen sc1")
    I("s_mov_b64 exec, 1")
    I(f"buffer_load_dword v14, v{cT[0]}, {sr(sWS, 4)}, s{sT2} offen sc1")
    if Lr < 3:
        I(f"s_add_u32 s{sT0}, s{sB}, {bofs}")
        I(f"s_mul_i32 s{sT0}, s{sT0}, 3"); I(f"s_add_u32 s{sT0}, s{sT0}, {Lr}"); I(f"s_lshl_b32 s{sT0}, s{sT0}, 8")
        I(f"s_lshl_b32 s{sT1}, s{sH}, 3"); I(f"s_add_u32 s{sT0}, s{sT0}, s{sT1}")
        I(f"s_lshl_b32 s{sT1}, s{sT0}, 9"); I(f"s_add_u32 s{sT1}, s{sT1}, {WS_Q}")
        I(f"s_lshl_b32 s{sT2}, s{sT0}, 3"); I(f"s_add_u32 s{sT2}, s{sT2}, {WS_ST}")
        I(f"buffer_load_dword v14, v{cT[0]}, {sr(sWS, 4)}, s{sT2} offen sc1")
        I("s_mov_b32 exec_lo, -1")
        I(f"buffer_load_dword v14, v{cT[0]}, {sr(sWS, 4)}, s{sT1} offen sc1")
    I("s_mov_b64 exec, -1")
def doA(Lr, bofs=0):
    setn(Lr, bofs); I(f"s_mov_b32 s{sT1}, {Lr}"); call("S_A"); cstamp(f"A{Lr+1}")
def doB(Lr, bofs=0):
    setn(Lr, bofs); call("S_B"); cstamp(f"B{Lr+1}")
def qidx(Lr):
    I(f"s_mul_i32 s{sT0}, s{sB}, 3"); I(f"s_add_u32 s{sT0}, s{sT0}, {Lr}"); I(f"s_lshl_b32 s{sT0}, s{sT0}, 8")
def doCD(Lr):
    setn(Lr); set_dly(Lr); call("S_C")
    qidx(Lr)
    I(f"s_add_u32 s{sT0}, s{sT0}, s{sCHUNK}")
    I(f"s_lshl_b32 s{sT1}, s{sT0}, 9"); I(f"s_add_u32 s{sT1}, s{sT1}, {WS_Q}")
    I(f"s_lshl_b32 s{sT2}, s{sT0}, 3"); I(f"s_add_u32 s{sT2}, s{sT2}, {WS_ST}")
    I(f"s_mov_b32 s{sT3}, {(Lr + 1) & 1}")
    call("S_D"); cstamp(f"CD{Lr+1}")
def doE(Lr):
    qidx(Lr)
    I(f"s_lshl_b32 s{sT1}, s{sH}, 3"); I(f"s_add_u32 s{sT0}, s{sT0}, s{sT1}")
    I(f"s_lshl_b32 s{sT1}, s{sT0}, 9"); I(f"s_add_u32 s{sT1}, s{sT1}, {WS_Q}")
    I(f"s_lshl_b32 s{sT2}, s{sT0}, 3"); I(f"s_add_u32 s{sT2}, s{sT2}, {WS_ST}")
    I(f"s_mov_b32 s{sQA}, {MISC + QL + (4 + Lr) * 256}")
    I(f"s_mov_b32 s{sT3}, {((Lr + 1) & 1) * 512}")
    call("S_E"); bumpQF(); cstamp(f"E{Lr+1}")
def doC4(lab):
    I(f"s_sub_u32 s{sT0}, s{sB}, 1"); I(f"s_lshl_b32 s{sT0}, s{sT0}, 3")
    I(f"s_cmp_lg_u32 s{sT0}, s{sH}")
    I(f"s_cbranch_scc1 {lab}")
    setn(3, -1); set_dly(3); call("S_C")
    xoff(cT[0], cT[1], cT[2])
    I(f"s_sub_u32 s{sT0}, s{sB}, 1"); I(f"s_mul_i32 s{sT0}, s{sT0}, 1280"); I(f"s_mul_i32 s{sT1}, s{sI}, 160"); I(f"s_add_u32 s{sT0}, s{sT0}, s{sT1}")
    I(f"buffer_store_short v{vX}, v{cT[0]}, {sr(sOUT, 4)}, s{sT0} offen")
    I(f"s_mov_b64 exec, {sr(MT)}")
    I(f"buffer_store_short_d16_hi v{vX}, v{cT[1]}, {sr(sOUT, 4)}, s{sT0} offen")
    I("s_mov_b64 exec, -1")
    L(lab)
def xoff(o0, o1, t):
    I(f"v_lshrrev_b32 v{t}, 7, v{vLIN}"); I(f"v_and_b32 v{t}, 6, v{t}")
    I(f"v_lshrrev_b32 v{o0}, 1, v{vLIN}"); I(f"v_and_b32 v{o1}, 0x18, v{o0}"); I(f"v_and_b32 v{o0}, 0x78, v{o0}")
    I(f"v_add_u32 v{o0}, v{o0}, v{t}")
    I(f"v_add3_u32 v{o1}, v{o1}, v{t}, 64"); I(f"v_add_u32 v{o1}, 64, v{o1}")

L("L_chain")
I(f"v_mov_b32 v{vST2}, 0")
cstamp("start")
C("prefetch own code into L2")
I(f"v_lshlrev_b32 v{cT[0]}, 3, v{vLIN}")
NCODE = P.get("NCODE", 3)
for k in range(NCODE):
    I(f"v_add_u32 v{cT[1]}, {k * 8192}, v{cT[0]}")
    I(f"v_min_u32 v{cT[1]}, 0x7abcdef0, v{cT[1]}")
    I(f"v_mov_b32 v{G0 + 1}, s{sPCB + 1}")
    I(f"v_add_co_u32 v{G0}, vcc, s{sPCB}, v{cT[1]}")
    I(f"v_addc_co_u32 v{G0 + 1}, vcc, 0, v{G0 + 1}, vcc")
    I(f"global_load_dword v{G0 + 2}, {vr(G0, 2)}, off")
C("wq_A + x0")
I(f"s_mov_b32 s{sQF}, 0"); I(f"s_mov_b32 s{sNEED}, 0"); I(f"s_mov_b32 s{sLDS}, 0")
def wq_load(ty, ptr):
    srd(sTMPD, ptr, 640 * 8192)
    I(f"v_and_b32 v{cT[3]}, 0xf0, v{vLIN}"); I(f"v_lshrrev_b32 v{cT[2]}, 8, v{vLIN}"); I(f"v_lshl_add_u32 v{cT[3]}, v{cT[2]}, 13, v{cT[3]}")
    I(f"s_mul_i32 s{sT0}, s{sI}, {80 * 8192}"); I(f"s_lshl_b32 s{sT1}, s{sH}, 8"); I(f"s_add_u32 s{sT0}, s{sT0}, s{sT1}")
    for u in range(20):
        I(f"buffer_load_dwordx4 {vr(WQ[ty] + 4 * u, 4, 'a')}, v{cT[3]}, {sr(sTMPD, 4)}, s{sT0} offen nt")
        if u < 19: I(f"s_add_u32 s{sT0}, s{sT0}, {4 * 8192}")
srd(sTMPD, 92, 5120)
xoff(cT[0], cT[1], cT[2])
I(f"s_mul_i32 s{sT0}, s{sI}, 160")
XR = G0 + 24
for b in range(4):
    I(f"buffer_load_ushort v{XR + 2 * b}, v{cT[0]}, {sr(sTMPD, 4)}, s{sT0} offen offset:{b * 1280}")
    I(f"buffer_load_ushort v{XR + 2 * b + 1}, v{cT[1]}, {sr(sTMPD, 4)}, s{sT0} offen offset:{b * 1280}")
wq_load("A", 94)
I("s_barrier")
cstamp("wq issued", fine=True)
I(f"s_mov_b32 s{sMODE}, 0")
I(f"s_getreg_b32 s{sDLY}, hwreg(HW_REG_XCC_ID)")
I(f"s_and_b32 s{sDLY}, s{sDLY}, 15"); I(f"s_add_u32 s{sDLY}, s{sDLY}, 64")
def ones_init():
    I(f"v_mov_b32 v{cT[1]}, 0x3f803f80")
    for k in range(8): dpp("v_and_b32", G0 + k, vM0 + k % 4, cT[1], "row_ror:8")
def cs_store(ti):
    I(f"s_lshl_b32 s{sT0}, s{sCHUNK}, 9"); I(f"s_add_u32 s{sT0}, s{sT0}, {WS_CS + ti * 0x20000 - 512}")
    I("s_mov_b32 exec_lo, 0")
    I(f"buffer_store_dwordx4 {vr(G0 + 8)}, v{vLIN}, {sr(sWS, 4)}, s{sT0} offen sc1")
    I("s_mov_b64 exec, -1")
def cs_gather(ti):
    I(f"s_lshl_b32 s{sT0}, s{sH}, 12"); I(f"s_add_u32 s{sT0}, s{sT0}, {WS_CS + ti * 0x20000}")
    for j in range(4): I(f"buffer_load_dwordx4 {vr(G0 + 4 * j)}, v{vLIN}, {sr(sWS, 4)}, s{sT0} offen offset:{j * 1024} sc1")
    I(f"v_lshrrev_b32 v{cT[0]}, 1, v{vLIN}"); I(f"v_add_u32 v{cT[0]}, v{cT[0]}, v{vMISC}")
    I("s_waitcnt vmcnt(0)")
    padd(0, 1); padd(2, 3); padd(0, 2); fold4(G0)
    I(f"ds_write_b64 v{cT[0]}, {vr(G0, 2)} offset:{CSL + ti * 512}")
def dbg_flag(add):
    I(f"s_add_u32 s{sT0}, s{sDLY}, {add}")
    I(f"v_mov_b32 v{cT[0]}, s{sT0}"); I(f"v_mov_b32 v{cT[1]}, 0")
    I("s_waitcnt vmcnt(0)")
    I("s_mov_b64 exec, 1")
    I(f"buffer_store_byte v{cT[0]}, v{cT[1]}, {sr(sDBG, 4)}, s{sCHUNK} offen sc1")
    I("s_mov_b64 exec, -1")
def e0(b):
    I(f"s_lshl_b32 s{sT0}, s{sH}, 3"); I(f"s_add_u32 s{sT0}, s{sT0}, {b * 256}")
    I(f"s_lshl_b32 s{sT1}, s{sT0}, 9"); I(f"s_add_u32 s{sT1}, s{sT1}, {WS_Q0}")
    I(f"s_lshl_b32 s{sT2}, s{sT0}, 3"); I(f"s_add_u32 s{sT2}, s{sT2}, {WS_ST0}")
    I(f"s_mov_b32 s{sQA}, {MISC + QL + b * 256}"); I(f"s_mov_b32 s{sT3}, 0")
    call("S_E")
for k in range(4): I(f"v_mov_b32 v{G0 + 32 + k}, -1")
I("s_waitcnt vmcnt(0)")
cstamp("wq arrived", fine=True)
wq_load("B", 98)
ones_init()
I(f"v_lshrrev_b32 v{cT[0]}, 2, v{vLIN}"); I(f"v_add_u32 v{cT[0]}, {MISC + XL:#x}, v{cT[0]}")
for b in range(4):
    I(f"v_lshl_or_b32 v{vX}, v{XR + 2 * b + 1}, 16, v{XR + 2 * b}")
    I(f"ds_write_b32 v{cT[0]}, v{vX} offset:{b * 256}")
    I(f"s_add_u32 s{sT0}, s{sCHUNK}, {b * 256}")
    I(f"s_lshl_b32 s{sT1}, s{sT0}, 9"); I(f"s_add_u32 s{sT1}, s{sT1}, {WS_Q0}")
    I(f"s_lshl_b32 s{sT2}, s{sT0}, 3"); I(f"s_add_u32 s{sT2}, s{sT2}, {WS_ST0}")
    I(f"s_mov_b32 s{sT3}, 0")
    call("S_D")
    if b == 0: cs_store(0)
    I(f"s_mul_i32 s{sT0}, s2, {NCLR * 1024}"); I(f"s_add_u32 s{sT0}, s{sT0}, {b * 5 * 1024}")
    for k in range(5):
        if k == 4: I(f"s_add_u32 s{sT0}, s{sT0}, 4096")
        I(f"buffer_store_dwordx4 {vr(G0 + 32)}, v{vLIN}, {sr(sWS, 4)}, s{sT0} offen offset:{(k % 4) * 1024} sc1")
assert NCLR == 20
I(f"s_waitcnt vmcnt({NCLR + 9})")
I(f"s_mov_b32 s{sT1}, {WS_SIZE}"); I(f"s_mov_b32 s{sT2}, {WS_SIZE}"); I(f"s_mov_b32 s{sT3}, 1")
call("S_D")
cs_store(1)
cstamp("D x5 done", fine=True)
dbg_flag(0)
cstamp("published")
own_issue(["KA", "VA"], 0)
def wo_stage(ti, ptr):
    I(f"v_and_b32 v{cT[3]}, 0xf0, v{vLIN}"); I(f"v_lshrrev_b32 v{cT[2]}, 8, v{vLIN}"); I(f"s_movk_i32 s{sT0}, 1280"); I(f"v_mad_u32_u24 v{cT[3]}, v{cT[2]}, s{sT0}, v{cT[3]}")
    I("s_mov_b32 exec_lo, 0x03ff03ff"); I("s_mov_b32 exec_hi, 0x03ff03ff")
    srd(sTMPD, ptr, 4096 * 1280)
    I(f"s_mul_i32 s{sT0}, s{sH}, {128 * 1280}"); I(f"s_mul_i32 s{sT1}, s{sI}, 160"); I(f"s_add_u32 s{sT0}, s{sT0}, s{sT1}")
    I(f"s_mov_b32 s{sT1}, {STG + ti * 32768}")
    lp = g.newlabel("Lwo")
    L(lp)
    I(f"s_mov_b32 m0, s{sT1}")
    I(f"s_add_u32 s{sT1}, s{sT1}, 1024")
    I(f"s_waitcnt vmcnt({P.get('WOP', 12)})")
    I(f"buffer_load_dwordx4 v{cT[3]}, {sr(sTMPD, 4)}, s{sT0} offen lds")
    I(f"s_add_u32 s{sT0}, s{sT0}, {4 * 1280}")
    I(f"s_cmp_lt_u32 s{sT1}, {STG + (ti + 1) * 32768}")
    I(f"s_cbranch_scc1 {lp}")
    I("s_mov_b64 exec, -1")
wo_stage(0, 96)
cstamp("woA issued", fine=True)
C("all workgroups published + cleared?  decide hand-off mode")
I(f"v_lshrrev_b32 v{cT[1]}, 2, v{vLIN}"); I(f"s_mov_b32 s{sSPIN}, 0")
I(f"s_lshl_b32 s{sT1}, s{sH}, 3"); I(f"v_and_b32 v{cT[2]}, 0x70, v{vLIN}"); I(f"v_lshrrev_b32 v{cT[2]}, 4, v{cT[2]}")
I(f"s_lshl_b32 s{sT0}, s{sH}, 12"); I(f"s_add_u32 s{sT0}, s{sT0}, {WS_CS}"); I(f"s_add_u32 s{sT2}, s{sT0}, 0x20000")
L("L_c1w")
I(f"buffer_load_dword v{G0 + 32}, v{cT[1]}, {sr(sDBG, 4)}, 0 offen sc1")
I(f"buffer_load_ubyte v{G0 + 33}, v{cT[2]}, {sr(sDBG, 4)}, s{sT1} offen sc1")
I("s_waitcnt vmcnt(0)")
I(f"v_and_b32 v{G0 + 32}, 0x40404040, v{G0 + 32}")
I(f"v_cmp_ne_u32 vcc, 0x40404040, v{G0 + 32}")
I("s_cbranch_vccz L_c1ok")
I("s_sleep 16")
spin_tail("L_c1w")
L("L_c1ok")
for j in range(8): I(f"buffer_load_dwordx4 {vr(G0 + 4 * j)}, v{vLIN}, {sr(sWS, 4)}, s{(sT0, sT2)[j // 4]} offen offset:{(j % 4) * 1024} sc1")
C("touch q1(0) records so that the gather below hits L2")
I(f"s_lshl_b32 s{sT0}, s{sH}, 12"); I(f"s_add_u32 s{sT0}, s{sT0}, {WS_Q0}")
I(f"v_cmp_ne_u32 vcc, s{sDLY}, v{G0 + 33}")
I("s_cmp_eq_u64 vcc, 0")
I(f"s_cselect_b32 s{sMODE}, {P.get('LOCAL', 1)}, 0")
cstamp("flags ok", fine=True, val=sSPIN)
I(f"v_mov_b32 v{cT[1]}, s{sMODE}")
I(f"ds_write_b32 v{vMISC}, v{cT[1]} offset:{MDL}")
I(f"v_lshrrev_b32 v{cT[0]}, 1, v{vLIN}"); I(f"v_add_u32 v{cT[0]}, v{cT[0]}, v{vMISC}")
I("s_waitcnt vmcnt(0)")
padd(0, 1); padd(2, 3); padd(4, 5); padd(6, 7); padd(0, 2); padd(4, 6); fold4(G0); fold4(G0 + 16)
I(f"ds_write_b64 v{cT[0]}, {vr(G0, 2)} offset:{CSL}")
I(f"ds_write_b64 v{cT[0]}, {vr(G0 + 16, 2)} offset:{CSL + 512}")
e0(0)
bumpQF()
cstamp("q1 ready")
pretouch(0)
wo_stage(1, 100)
own_pass("A", 0)
C("wo transposing reads")
I(f"v_lshrrev_b32 v{cT[0]}, 8, v{vLIN}"); I(f"v_lshlrev_b32 v{cT[0]}, 11, v{cT[0]}")
I(f"v_and_b32 v{cT[1]}, 0xc0, v{vLIN}"); I(f"v_lshl_add_u32 v{cT[0]}, v{cT[1]}, 2, v{cT[0]}")
I(f"v_lshrrev_b32 v{cT[1]}, 1, v{vLIN}"); I(f"v_and_b32 v{cT[1]}, 0x18, v{cT[1]}")
I(f"v_add_u32 v{cT[0]}, v{cT[0]}, v{cT[1]}"); I(f"v_add_u32 v{cT[3]}, {STG:#x}, v{cT[0]}")
I("s_waitcnt vmcnt(0)")
for ti, ty in enumerate("AB"):
    for nt in range(5):
        for kk in range(4):
            for hf in range(2):
                I(f"ds_read_b64_tr_b16 {vr(WO[ty] + (nt * 4 + kk) * 4 + 2 * hf, 2)}, v{cT[3]} offset:{ti * 32768 + kk * 8192 + hf * 1024 + nt * 32}")
I("s_waitcnt lgkmcnt(0)")
I(f"s_mov_b32 s{sQF}, 3"); bumpQF()
cstamp("wo ready")
L("L_cloop")
doB(0)
I(f"s_cmp_eq_u32 s{sB}, 0"); I("s_cbranch_scc1 L_c_a")
own_pass("B", 3, 6)
L("L_c_a")
own_issue(["KB", "VB"], 0)
doCD(0)
pretouch(1)
doE(0)
I(f"s_cmp_eq_u32 s{sB}, 0"); I("s_cbranch_scc1 L_c_b")
doB(3, -1)
L("L_c_b")
own_pass("B", 1, 4)
doB(1); doCD(1); doE(1)
pretouch(2)
own_pass("A", 2, 5)
I(f"s_cmp_eq_u32 s{sB}, 3"); I("s_cbranch_scc1 L_c_d")
own_issue(["KA", "VA"], 1)
L("L_c_d")
doB(2)
I(f"s_cmp_eq_u32 s{sB}, 3"); I("s_cbranch_scc1 L_c_c")
C("q1(b+1)")
I(f"s_add_u32 s{sT0}, s{sB}, 1"); I(f"s_lshl_b32 s{sT0}, s{sT0}, 8")
I(f"s_add_u32 s{sQA}, s{sT0}, {MISC + QL}")
I(f"s_lshl_b32 s{sT1}, s{sH}, 3"); I(f"s_add_u32 s{sT0}, s{sT0}, s{sT1}")
I(f"s_lshl_b32 s{sT1}, s{sT0}, 9"); I(f"s_add_u32 s{sT1}, s{sT1}, {WS_Q0}")
I(f"s_lshl_b32 s{sT2}, s{sT0}, 3"); I(f"s_add_u32 s{sT2}, s{sT2}, {WS_ST0}")
I(f"s_mov_b32 s{sT3}, 0")
call("S_E")
bumpQF()
L("L_c_c")
doCD(2)
I(f"s_cmp_eq_u32 s{sB}, 3"); I("s_cbranch_scc1 L_c_e")
I(f"s_add_u32 s{sB}, s{sB}, 1")
own_pass("A", 0)
pretouch(0)
I(f"s_sub_u32 s{sB}, s{sB}, 1")
L("L_c_e")
doE(2)
pretouch(3)
I(f"s_add_u32 s{sB}, s{sB}, 1")
I(f"s_cmp_lt_u32 s{sB}, 4"); I("s_cbranch_scc1 L_cloop")
L("L_ctail")
own_pass("B", 3, 6)
doB(3, -1)
doC4("L_c_g")
for bb in (3, 2, 1):
    I(f"s_mov_b32 s{sB}, {bb}")
    doC4(f"L_c_h{bb}")
cstamp("end")
vSTAMP = vST2
dump_stamps()
I("s_endpgm")

step_A(); step_B(); step_C(); step_D(); step_E()
kpass("C_kA", "KA", CU["KA"], [0, 1]); vpass("C_vA", "VA", CU["VA"], [0, 1])
kpass("C_kB", "KB", CU["KB"], [0, 1]); vpass("C_vB", "VB", CU["VB"], [0, 1])
L("L_code_end")
I("s_endpgm")

hdr = open("cdna_kernels/" + NAME + ".s.ref").read().split("; Override launch geometry")[0]
out = hdr + "; @launch grid=(256,1,1) block=(256,1,1) lds=163840\n"
out += "; generated by gen/gen_kernel.py  " + " ".join(f"{k}={v}" for k, v in P.items()) + "\n"
out += f'.amdgcn_target "amdgcn-amd-amdhsa--gfx950"\n.text\n.globl {NAME}_kernel\n.p2align 8\n.type {NAME}_kernel,@function\n'
out += g.text()
out += f""".section .rodata,"a"
.p2align 6
.amdhsa_kernel {NAME}_kernel
  .amdhsa_next_free_vgpr 512
  .amdhsa_next_free_sgpr 102
  .amdhsa_accum_offset 256
  .amdhsa_group_segment_fixed_size 0
  .amdhsa_kernarg_size 104
  .amdhsa_user_sgpr_count 2
  .amdhsa_user_sgpr_kernarg_segment_ptr 1
  .amdhsa_system_sgpr_workgroup_id_x 1
.end_amdhsa_kernel
"""
import subprocess, tempfile
with tempfile.TemporaryDirectory() as td:
    open(td + "/a.s", "w").write(out)
    subprocess.check_call(["clang", "-x", "assembler", "-target", "amdgcn-amd-amdhsa", "-mcpu=gfx950", "-c", td + "/a.s", "-o", td + "/a.o"])
    nm = subprocess.check_output(["llvm-objdump", "-t", td + "/a.o"], text=True)
    sym = {l.split()[-1]: int(l.split()[0], 16) for l in nm.splitlines() if ".text" in l and len(l.split()) >= 4}
    size = sym["L_code_end"] - sym[NAME + "_kernel"]
assert size <= NCODE * 8192, size
out = out.replace("0x7abcdef0", hex(size - 16))
print("code bytes", size)
open(sys.argv[1], "w").write(out)
print("lines", len(g.lines), "nops", g.nops)
```
